```python
import torch

def _softmax(x, axis=-1):
    return torch.softmax(x, dim=axis)
def _gelu(x):
    return torch.nn.functional.gelu(x, approximate="tanh")
def _silu(x):
    return torch.nn.functional.silu(x)
def _sigmoid(x):
    return torch.sigmoid(x)
def _layernorm(x, axis=-1, eps=1e-5):
    m = x.mean(dim=axis, keepdim=True)
    v = x.var(dim=axis, keepdim=True, unbiased=False)
    return (x - m) / torch.sqrt(v + eps)
def _scatter_add(tgt, idx, src, axis=0):
    return tgt.clone().index_add_(axis, idx, src)
def _segment_sum(src, seg, n):
    out = torch.zeros((n,) + src.shape[1:], dtype=src.dtype)
    return out.index_add_(0, seg, src)
def _pad(x, pw):
    flat = tuple(v for pair in reversed(pw) for v in pair)
    return torch.nn.functional.pad(x, flat)

kernel_name = 'concat_heads__spectral_gfnet__ssm_conv_h3__prompt'

def setup_inputs():

    _w = (lambda a: (lambda t: t.to(torch.bfloat16) if t.is_floating_point() else t)(torch.as_tensor(a)))
    def _A_setup():
        B, S, D = 1, 2048, 640
        Df = D // 2 + 1
        return {
            "x": _w((lambda *s: torch.randn(*s, dtype=torch.bfloat16) * 0.05)(B, S, D)),
            "w_r": _w((lambda *s: torch.randn(*s, dtype=torch.bfloat16) * 0.05)(S, Df) * 0.02),
            "w_i": _w((lambda *s: torch.randn(*s, dtype=torch.bfloat16) * 0.05)(S, Df) * 0.02),
        }
    _A_in = _A_setup()

    def _B_setup():
        B, S, D = 1, 2048, 640
        ks = 4
        return {
            "q": _w((lambda *s: torch.randn(*s, dtype=torch.bfloat16) * 0.05)(B, S, D)),
            "k": _w((lambda *s: torch.randn(*s, dtype=torch.bfloat16) * 0.1)(B, S, D)),
            "v": _w((lambda *s: torch.randn(*s, dtype=torch.bfloat16) * 0.1)(B, S, D)),
            "shift_k": _w((lambda *s: torch.randn(*s, dtype=torch.bfloat16) * 0.1)(D, ks) * 0.5),
            "ssm_k": _w((lambda *s: torch.randn(*s, dtype=torch.bfloat16) * 0.1)(D, S) * (1.0 / S ** 0.5)),
            "ssm_D": _w((lambda *s: torch.randn(*s, dtype=torch.bfloat16) * 0.1)(D)),
        }
    _B_in = _B_setup()

    return {
        "A_x": _A_in["x"],
        "A_w_r": _A_in["w_r"],
        "A_w_i": _A_in["w_i"],
        "B_q": _B_in["q"],
        "B_k": _B_in["k"],
        "B_v": _B_in["v"],
        "B_shift_k": _B_in["shift_k"],
        "B_ssm_k": _B_in["ssm_k"],
        "B_ssm_D": _B_in["ssm_D"],
    }

def reference(A_x, A_w_r, A_w_i, B_q, B_k, B_v, B_shift_k, B_ssm_k, B_ssm_D):
    def _A_ref(x, w_r, w_i):
        B, S, D = x.shape
        X = (lambda x, axes=(-2,-1): torch.fft.rfft2(x.float(), dim=axes))(x, axes=(-2, -1))
        W = w_r + 1j * w_i
        X = X * W
        y = (lambda x, s, axes=(-2,-1): torch.fft.irfft2(x, s=s, dim=axes).to(torch.bfloat16))(X, (S, D), axes=(-2, -1))
        return y

    def _B_ref(q, k, v, shift_k, ssm_k, ssm_D):
        B, S, D = q.shape
        ks = shift_k.shape[-1]
        k_pad = _pad(k, ((0, 0), (ks - 1, 0), (0, 0)))
        k_shift = torch.zeros_like(k)
        for t in range(ks):
            k_shift = k_shift + k_pad[:, t:t + S, :] * shift_k[:, ks - 1 - t][None, None, :]
        kv = k_shift * v
        L = 2 * S
        kv_pad = _pad(kv, ((0, 0), (0, S), (0, 0)))
        kf_pad = _pad(ssm_k, ((0, 0), (0, S)))
        kv_f = (lambda x, axes=(-2,-1): torch.fft.rfft2(x.float(), dim=axes))(kv_pad[:, None, :, :], axes=(1, 2))
        kf_f = (lambda x, axes=(-2,-1): torch.fft.rfft2(x.float(), dim=axes))(kf_pad[:, None, :], axes=(1, 2))
        kf_f = (lambda x, *d: x.permute(*d))(kf_f, 1, 2, 0)
        y_f = kv_f * kf_f[None, :, :, :]
        y = (lambda x, s, axes=(-2,-1): torch.fft.irfft2(x, s=s, dim=axes).to(torch.bfloat16))(y_f, (1, L), axes=(1, 2))[:, 0, :S, :]
        y = y + kv * ssm_D[None, None, :]
        return q * y

    a = _A_ref(A_x, A_w_r, A_w_i)
    b = _B_ref(B_q, B_k, B_v, B_shift_k, B_ssm_k, B_ssm_D)
    return torch.concatenate([a, b], axis=-1)
```

```python
import re

TRANS = ("v_sin_f32","v_cos_f32","v_exp_f32","v_log_f32","v_rcp_f32","v_rsq_f32","v_sqrt_f32")

def regs_of(tok):
    tok = tok.strip()
    if tok.startswith("-"): tok = tok[1:]
    m = re.fullmatch(r"abs\((.*)\)", tok)
    if m: tok = m.group(1)
    m = re.fullmatch(r"([vas])(\d+)", tok)
    if m: return [(m.group(1), int(m.group(2)))]
    m = re.fullmatch(r"([vas])\[(\d+):(\d+)\]", tok)
    if m: return [(m.group(1), i) for i in range(int(m.group(2)), int(m.group(3))+1)]
    if tok == "vcc": return [("s", 106), ("s", 107)]
    if tok == "exec": return [("s", 126), ("s", 127)]
    if tok == "m0": return [("s", 124)]
    return []

class Ins:
    __slots__ = ("text","mn","ops","rd","wr","kind","passes","ws")
    def __init__(self, text):
        self.text = text
        t = text.split(";")[0].strip()
        parts = t.split(None, 1)
        self.mn = parts[0]
        rest = parts[1] if len(parts) > 1 else ""
        ops = [o.strip() for o in rest.split(",")] if rest else []
        clean = []
        for o in ops:
            clean.append(o.split()[0] if o else o)
        self.ops = clean
        self.rd = set(); self.wr = set(); self.passes = 0; self.ws = 1
        mn = self.mn
        R = lambda i: regs_of(clean[i]) if i < len(clean) else []
        if mn.startswith("v_mfma"):
            self.kind = "mfma"
            self.passes = 8 if "32x32x16" in mn else 4
            self.wr.update(R(0))
            for i in (1,2,3): self.rd.update(R(i))
        elif mn.startswith("v_"):
            self.kind = "valu"
            if mn.startswith("v_swap"):
                for i in (0,1): self.rd.update(R(i)); self.wr.update(R(i))
            else:
                self.wr.update(R(0))
                start = 1
                if mn.startswith(("v_add_co","v_sub_co","v_addc_co","v_subb_co")):
                    self.wr.update(R(1)); start = 2
                for i in range(start, len(clean)): self.rd.update(R(i))
                if mn.startswith(("v_fmac","v_pk_fmac","v_mac")) : self.rd.update(R(0))
                if mn.startswith("v_cndmask") and len(clean) == 3: self.rd.update(regs_of("vcc"))
        elif mn.startswith("ds_"):
            self.kind = "ds"
            if mn.startswith("ds_read") or mn.startswith("ds_bpermute") or mn.startswith("ds_permute"):
                self.wr.update(R(0))
                for i in range(1, len(clean)): self.rd.update(R(i))
                if "d16" in mn: self.rd.update(R(0))
            else:
                for i in range(len(clean)): self.rd.update(R(i))
        elif mn.startswith(("buffer_","global_")):
            self.kind = "vmem"
            islds = " lds" in t or "_lds_" in mn
            if "load" in mn and not islds:
                self.wr.update(R(0))
                for i in range(1, len(clean)): self.rd.update(R(i))
                if "d16" in mn: self.rd.update(R(0))
            else:
                for i in range(len(clean)): self.rd.update(R(i))
                if islds: self.rd.update(regs_of("m0"))
        elif mn.startswith("s_"):
            self.kind = "salu"
            if mn == "s_nop":
                self.ws = int(clean[0]) + 1
            elif mn.startswith(("s_load","s_memtime","s_memrealtime","s_buffer_load")):
                self.kind = "smem"
                self.wr.update(R(0))
                for i in range(1, len(clean)): self.rd.update(R(i))
            elif mn.startswith(("s_cmp","s_cbranch","s_branch","s_waitcnt","s_barrier","s_endpgm","s_sleep","s_setprio","s_bitcmp")):
                for i in range(len(clean)): self.rd.update(R(i))
            else:
                self.wr.update(R(0))
                for i in range(1, len(clean)): self.rd.update(R(i))
                if "saveexec" in mn: self.wr.update(regs_of("exec"))
        else:
            raise ValueError("unknown instr: " + text)

class Prog:
    def __init__(self):
        self.out = []
        self.hist = []
        self.vm = []
        self.lg = []
        self.smem = set()
        self.maxv = -1; self.maxa = -1; self.maxs = -1
        self.stats = {}
    def raw(self, s): self.out.append(s)
    def comment(self, s): self.out.append("    ; " + s)
    def label(self, name):
        self.out.append(name + ":")
        self.hist = []
    def reset_state(self):
        self.hist = []; self.vm = []; self.lg = []; self.smem = set()
    def _need(self, ins):
        need = 0
        dist = 0
        for p in reversed(self.hist):
            req = 0
            touched = ins.rd | ins.wr
            if p.kind == "valu":
                vw = {r for r in p.wr if r[0] in "va"}
                sw = {r for r in p.wr if r[0] == "s"}
                if ins.kind == "mfma" and (vw & ins.rd): req = max(req, 2)
                if p.mn in TRANS and ins.kind == "valu" and ins.mn not in TRANS and (vw & ins.rd): req = max(req, 1)
                if p.mn in TRANS and ins.kind in ("vmem","ds") and (vw & ins.rd): req = max(req, 1)
                if ins.mn.startswith(("v_readfirstlane","v_readlane")) and (vw & ins.rd): req = max(req, 1)
                if ins.mn.startswith("v_permlane") and (vw & touched): req = max(req, 2)
                if ("dpp" in ins.text or "quad_perm" in ins.text or "row_" in ins.text) and (vw & ins.rd): req = max(req, 2)
                if sw & ins.rd:
                    if ins.kind == "valu": req = max(req, 2)
                    if ins.kind == "vmem": req = max(req, 5)
                    if ins.kind in ("salu","smem"): req = max(req, 2)
            elif p.kind == "mfma":
                big = 12 if p.passes == 8 else 8
                if ins.kind == "mfma":
                    ab = set(regs_of(ins.ops[1])) | set(regs_of(ins.ops[2]))
                    c = set(regs_of(ins.ops[3]))
                    if p.wr & ab: req = max(req, big)
                    if p.wr & c:
                        if not (c == p.wr and ins.passes == p.passes): req = max(req, big-2)
                    elif (p.wr & ins.wr): req = max(req, big-2)
                elif ins.kind in ("valu","vmem","ds"):
                    if p.wr & touched: req = max(req, big)
                    pc = set(regs_of(p.ops[3]))
                    if ins.kind == "valu" and (pc & ins.wr): req = max(req, 7 if p.passes == 8 else 3)
            elif p.kind == "vmem":
                if "store" in p.mn and ("x4" in p.mn or "x3" in p.mn):
                    data = set(regs_of(p.ops[0] if p.mn.startswith("buffer") else p.ops[1]))
                    if data & ins.wr: req = max(req, 2)
            elif p.kind == "salu":
                if ("s",124) in p.wr and ("s",124) in ins.rd: req = max(req, 1)
            need = max(need, req - dist)
            dist += p.ws
            if dist >= 20: break
        return need
    def _waits(self, ins):
        touched = ins.rd | ins.wr
        w = []
        n = None
        for i, d in enumerate(self.vm):
            if d & touched: n = len(self.vm) - 1 - i
        if n is not None:
            n = min(n, 63)
            w.append(f"vmcnt({n})"); self.vm = self.vm[len(self.vm)-n:] if n else []
        n = None
        if self.smem & touched:
            n = 0
        else:
            for i, d in enumerate(self.lg):
                if d & touched: n = len(self.lg) - 1 - i
            if n is not None and self.smem: n = 0
        if n is not None:
            n = min(n, 15)
            w.append(f"lgkmcnt({n})"); self.lg = self.lg[len(self.lg)-n:] if n else []
            if n == 0: self.smem = set()
        return w
    def _push(self, ins):
        self.out.append("    " + ins.text)
        self.hist.append(ins)
        if len(self.hist) > 24: self.hist.pop(0)
        self.stats[ins.kind] = self.stats.get(ins.kind, 0) + 1
        for k, i in (ins.rd | ins.wr):
            if k == "v": self.maxv = max(self.maxv, i)
            elif k == "a": self.maxa = max(self.maxa, i)
            elif k == "s" and i < 102: self.maxs = max(self.maxs, i)
    def __call__(self, text):
        for line in text.strip().split("\n"):
            line = line.strip()
            if not line or line.startswith(";"): continue
            self.emit(line)
    def emit(self, text):
        ins = Ins(text)
        if ins.mn == "s_waitcnt":
            m = re.search(r"vmcnt\((\d+)\)", text)
            if m:
                n = int(m.group(1)); self.vm = self.vm[len(self.vm)-n:] if (n and n < len(self.vm)) else ([] if n == 0 else self.vm)
            m = re.search(r"lgkmcnt\((\d+)\)", text)
            if m:
                n = int(m.group(1)); self.lg = self.lg[len(self.lg)-n:] if (n and n < len(self.lg)) else ([] if n == 0 else self.lg)
                if n == 0: self.smem = set()
            self._push(ins); return
        w = self._waits(ins)
        if w: self._push(Ins("s_waitcnt " + " ".join(w)))
        need = self._need(ins)
        while need > 0:
            k = min(need, 16)
            self._push(Ins(f"s_nop {k-1}")); need -= k
        self._push(ins)
        if ins.kind == "vmem": self.vm.append(set(ins.wr))
        elif ins.kind == "ds": self.lg.append(set(ins.wr))
        elif ins.kind == "smem": self.smem |= ins.wr
    def text(self): return "\n".join(self.out) + "\n"

class Alloc:
    def __init__(self, start=0, limit=256, kind="v"):
        self.n = start; self.limit = limit; self.kind = kind
    def __call__(self, cnt=1, align=None):
        if align is None: align = 1 if cnt == 1 else (2 if cnt == 2 else 4)
        self.n = (self.n + align - 1)//align*align
        r = self.n; self.n += cnt
        assert self.n <= self.limit, "out of registers"
        return r
def V(r, n=1): return f"v{r}" if n == 1 else f"v[{r}:{r+n-1}]"
def A(r, n=1): return f"a{r}" if n == 1 else f"a[{r}:{r+n-1}]"
def S(r, n=1): return f"s{r}" if n == 1 else f"s[{r}:{r+n-1}]"
import struct
def F(x): return "0x%08x" % struct.unpack("<I", struct.pack("<f", x))[0]
```

```python
import sys, copy
from asmlib import *

NAME = "concat_heads__spectral_gfnet__ssm_conv_h3__prompt"
Z1_OFF, Z1_SZ = 0,           88*32768
WT_OFF, WT_SZ = 4<<20,       321*8192
KV_OFF, KV_SZ = 8<<20,       160*16384
Z2_OFF, Z2_SZ = 12<<20,      128*32768
Y2_OFF, Y2_SZ = 16<<20,      640*4096
XB = 2048*640*2
WB = 2048*321*2
PX,PWR,PWI,PQ,PK,PV,PSK,PH,PD,POUT,PDBG,PWS = 4,6,8,10,12,14,16,18,20,22,24,26
SW = 28

def save(p): return (list(p.vm), list(p.lg), set(p.smem))
def restore(p, st): p.vm, p.lg, p.smem = list(st[0]), list(st[1]), set(st[2]); p.hist = []

def prologue(p):
    p(f"""
    s_load_dwordx16 s[4:19], s[0:1], 0
    s_load_dwordx8 s[20:27], s[0:1], 64
    v_lshrrev_b32 v1, 6, v0
    v_and_b32 v0, 63, v0
    v_readfirstlane_b32 s{SW}, v1
    """)

def srd(p, d, ptr, size, off=0):
    if off:
        p(f"s_add_u32 s{d}, s{ptr}, {off}")
        p(f"s_addc_u32 s{d+1}, s{ptr+1}, 0")
    else:
        p(f"s_mov_b32 s{d}, s{ptr}")
        p(f"s_mov_b32 s{d+1}, s{ptr+1}")
    p(f"s_mov_b32 s{d+2}, {size}")
    p(f"s_mov_b32 s{d+3}, 0x20000")

def mfma16(p, d, a, b, c, ak="v", bk="v"):
    cs = "0" if c is None else V(c,4)
    p(f"v_mfma_f32_16x16x32_bf16 {V(d,4)}, {ak}[{a}:{a+3}], {bk}[{b}:{b+3}], {cs}")
def mfma32(p, d, a, b, c, ak="v", bk="v"):
    cs = "0" if c is None else V(c,16)
    p(f"v_mfma_f32_32x32x16_bf16 {V(d,16)}, {ak}[{a}:{a+3}], {bk}[{b}:{b+3}], {cs}")
def cvt(p, d, lo, hi): p(f"v_cvt_pk_bf16_f32 v{d}, {lo}, {hi}")

def role_A1(p):
    v = Alloc(1)
    vi, vg, voff, vso, t0, t1, t2, t3 = [v() for _ in range(8)]
    fk, fg, vhalf = v(), v(), v()
    L = v(20); Aop = v(32); D = v(64); P = v(32); M1 = v(8); M2 = v(32); T1 = v(16)
    p(f"""
    s_lshr_b32 s48, s2, 4
    s_and_b32 s49, s2, 15
    s_lshl_b32 s49, s49, 2
    s_add_u32 s49, s49, s{SW}
    s_lshl_b32 s50, s48, 8
    s_add_u32 s50, s50, s49
    s_mul_i32 s50, s50, 1280
    v_and_b32 v{vi}, 15, v0
    v_lshrrev_b32 v{vg}, 4, v0
    v_and_b32 v{t0}, 3, v0
    v_mul_u32_u24 v{voff}, 81920, v{t0}
    v_mul_u32_u24 v{t1}, 320, v{vg}
    v_add_u32 v{voff}, v{voff}, v{t1}
    v_lshrrev_b32 v{t1}, 2, v{vi}
    v_lshl_add_u32 v{voff}, v{t1}, 4, v{voff}
    """)
    srd(p, 32, PX, XB)
    for e in range(5):
        p(f"buffer_load_dwordx4 {V(L+4*e,4)}, v{voff}, s[32:35], s50 offen offset:{64*e}")
    p(f"""
    v_lshlrev_b32 v{vso}, 20, v{vg}
    v_lshl_add_u32 v{vso}, v{t1}, 15, v{vso}
    v_lshl_add_u32 v{vso}, v{t0}, 4, v{vso}
    s_lshr_b32 s51, s49, 5
    s_lshl_b32 s51, s51, 8
    s_lshl_b32 s52, s48, 5
    s_add_u32 s51, s51, s52
    s_and_b32 s52, s49, 31
    s_add_u32 s51, s51, s52
    s_lshl_b32 s51, s51, 6
    """)
    for t in range(2):
        for js in range(4):
            p(f"s_add_u32 s{56+t*4+js}, s51, {js*8*32768 + t*4*32768}")
    srd(p, 36, PWS, Z1_SZ, Z1_OFF)
    p(f"""
    v_cvt_f32_u32 v{fk}, v{vi}
    v_cvt_f32_u32 v{fg}, v{vg}
    v_mov_b32 v{vhalf}, 1.0
    v_cmp_eq_u32 vcc, 0, v0
    v_mov_b32 v{t2}, 0.5
    v_cndmask_b32 v{vhalf}, v{vhalf}, v{t2}, vcc
    s_mov_b32 s54, 0x05040100
    s_mov_b32 s55, 0x07060302
    """)
    C = D
    p(f"v_mul_f32 v{t0}, {F(1/20)}, v{fk}")
    p(f"v_mul_f32 v{t1}, 5.0, v{fg}" .replace("5.0", F(5.0)))
    for e in range(5):
        p(f"v_add_f32 v{t2}, {F(float(e))}, v{t1}")
        p(f"v_mul_f32 v{t2}, v{t2}, v{t0}")
        p(f"v_cos_f32 v{C+e}, v{t2}")
        p(f"v_sin_f32 v{C+8+e}, v{t2}")
    cvt(p, M1+0, V(C+0), V(C+1)); cvt(p, M1+1, V(C+2), V(C+3)); cvt(p, M1+2, V(C+4), "0"); p(f"v_mov_b32 v{M1+3}, 0")
    cvt(p, M1+4, "-"+V(C+8), "-"+V(C+9)); cvt(p, M1+5, "-"+V(C+10), "-"+V(C+11)); cvt(p, M1+6, "-"+V(C+12), "0"); p(f"v_mov_b32 v{M1+7}, 0")
    for tau in range(8): p(f"v_mov_b32 v{Aop+4*tau+3}, 0")
    p(f"v_mul_f32 v{t0}, {F(1/640)}, v{fk}")
    p(f"v_mul_f32 v{t1}, {F(8.0)}, v{fg}")
    p(f"v_mul_f32 v{t3}, {F(1/32)}, v{fk}")
    for m in range(8):
        p(f"v_add_f32 v{t2}, {F(float(m))}, v{t1}")
        p(f"v_mul_f32 v{C}, v{t2}, v{t0}")
        p(f"v_mul_f32 v{C+1}, v{t2}, v{t3}")
        p(f"v_cos_f32 v{T1+2*m}, v{C}")
        p(f"v_sin_f32 v{T1+2*m+1}, v{C}")
        p(f"v_cos_f32 v{C+2}, v{C+1}")
        p(f"v_sin_f32 v{C+3}, v{C+1}")
        c, s = V(C+2), V(C+3)
        ks, jj = m//4, m%4
        r = lambda t, cc: M2 + ((t*2+cc)*2+ks)*4 + jj
        cvt(p, r(0,0), c, s); cvt(p, r(0,1), "-"+s, c)
        if m % 2 == 0: cvt(p, r(1,0), c, s); cvt(p, r(1,1), s, "-"+c)
        else:          cvt(p, r(1,0), "-"+c, "-"+s); cvt(p, r(1,1), "-"+s, c)
    for tau in range(8):
        sel = "s54" if tau % 2 == 0 else "s55"
        w = tau//2
        p(f"v_perm_b32 v{Aop+4*tau}, v{L+4+w}, v{L+w}, {sel}")
        p(f"v_perm_b32 v{Aop+4*tau+1}, v{L+12+w}, v{L+8+w}, {sel}")
        if tau % 2 == 0: p(f"v_and_b32 v{Aop+4*tau+2}, 0xffff, v{L+16+w}")
        else: p(f"v_lshrrev_b32 v{Aop+4*tau+2}, 16, v{L+16+w}")
    for tau in range(8):
        mfma16(p, D+8*tau, Aop+4*tau, M1, None)
        mfma16(p, D+8*tau+4, Aop+4*tau, M1+4, None)
    for tau in range(8):
        c, s = T1+2*tau, T1+2*tau+1
        for J in range(4):
            re, im = D+8*tau+J, D+8*tau+4+J
            a, b = (t0, t1) if J % 2 == 0 else (t2, t3)
            p(f"v_mul_f32 v{a}, v{re}, v{c}")
            p(f"v_mul_f32 v{b}, v{im}, v{c}")
            p(f"v_fmac_f32 v{a}, v{im}, v{s}")
            p(f"v_fma_f32 v{b}, -v{re}, v{s}, v{b}")
            cvt(p, P+8*J+tau, V(a), V(b))
    d2 = lambda J, t, c: D + ((J*2+t)*2+c)*4
    for t in range(2):
        for J in range(4):
            for c in range(2):
                mfma16(p, d2(J,t,c), P+8*J, M2+((t*2+c)*2+0)*4, None)
                mfma16(p, d2(J,t,c), P+8*J+4, M2+((t*2+c)*2+1)*4, d2(J,t,c))
    O = Aop
    for t in range(2):
        for J in range(4):
            p(f"v_mul_f32 v{d2(J,t,0)}, v{d2(J,t,0)}, v{vhalf}")
        for js in range(4):
            for J in range(4):
                cvt(p, O+(t*4+js)*4+J, V(d2(J,t,0)+js), V(d2(J,t,1)+js))
            masked = False
            if t == 1 and js == 0:
                p("s_mov_b32 exec_lo, 0xffff000f"); masked = True
            if t == 1 and js == 2:
                p("s_mov_b32 exec_hi, 0"); masked = True
            p(f"buffer_store_dwordx4 {V(O+(t*4+js)*4,4)}, v{vso}, s[36:39], s{56+t*4+js} offen")
            if masked: p("s_mov_b64 exec, -1")
    p("s_endpgm")

def role_WT(p, base):
    v = Alloc(1)
    voff, t0, t1, vrd, vso = [v() for _ in range(5)]
    vw = v(4); R = v(16); I = v(16); C = v(16)
    p(f"""
    s_sub_u32 s48, s2, {base}
    s_lshr_b32 s49, s48, 5          ; cb
    s_and_b32 s50, s48, 31
    s_lshl_b32 s50, s50, 2
    s_add_u32 s50, s50, s{SW}       ; rs
    s_and_b32 s51, s50, 7
    s_lshl_b32 s51, s51, 2          ; 4kq
    s_lshr_b32 s52, s50, 6
    s_lshl_b32 s52, s52, 5          ; 32p
    s_add_u32 s51, s51, s52
    s_lshr_b32 s52, s50, 3
    s_and_b32 s52, s52, 7
    s_lshl_b32 s52, s52, 8
    s_add_u32 s51, s51, s52         ; row0
    s_mul_i32 s56, s51, 642
    s_add_u32 s57, s56, {64*642}
    s_add_u32 s58, s56, {128*642}
    s_add_u32 s59, s56, {192*642}
    s_lshl_b32 s52, s49, 7
    v_lshl_add_u32 v{voff}, v0, 1, s52
    """)
    srd(p, 32, PWR, WB); srd(p, 36, PWI, WB)
    for x in range(4):
        for j in range(4):
            p(f"buffer_load_ushort v{R+4*x+j}, v{voff}, s[32:35], s{56+j} offen offset:{642*x}")
            p(f"buffer_load_ushort v{I+4*x+j}, v{voff}, s[36:39], s{56+j} offen offset:{642*x}")
    srd(p, 40, PWS, WT_SZ, WT_OFF)
    p(f"""
    s_lshl_b32 s53, s{SW}, 12
    v_bfe_u32 v{t0}, v0, 1, 2
    v_lshlrev_b32 v{t0}, 4, v{t0}
    v_lshl_add_u32 v{t0}, v0, 6, v{t0}
    v_add_u32 v{vw}, s53, v{t0}
    v_xor_b32 v{vw+1}, 16, v{vw}
    v_xor_b32 v{vw+2}, 32, v{vw}
    v_xor_b32 v{vw+3}, 48, v{vw}
    v_lshrrev_b32 v{t0}, 2, v0
    v_bfe_u32 v{t1}, v0, 3, 2
    v_xor_b32 v{t1}, v{t1}, v0
    v_and_b32 v{t1}, 3, v{t1}
    v_lshlrev_b32 v{t1}, 4, v{t1}
    v_lshl_add_u32 v{vrd}, v{t0}, 6, v{t1}
    v_add_u32 v{vrd}, s53, v{vrd}
    v_and_b32 v{t1}, 3, v0
    v_lshlrev_b32 v{t1}, 4, v{t1}
    v_lshl_add_u32 v{vso}, v{t0}, 13, v{t1}
    s_lshl_b32 s60, s49, 19
    s_lshl_b32 s52, s50, 6
    s_add_u32 s60, s60, s52
    s_add_u32 s61, s60, {16*8192}
    s_add_u32 s62, s60, {32*8192}
    s_add_u32 s63, s60, {48*8192}
    """)
    for x in range(4):
        for j in range(4):
            p(f"v_lshl_or_b32 v{C+4*x+j}, v{I+4*x+j}, 16, v{R+4*x+j}")
        p(f"ds_write_b128 v{vw+x}, {V(C+4*x,4)}")
    for y in range(4):
        p(f"ds_read_b128 {V(R+4*y,4)}, v{vrd} offset:{1024*y}")
    for y in range(4):
        p(f"buffer_store_dwordx4 {V(R+4*y,4)}, v{vso}, s[40:43], s{60+y} offen")
    p("s_endpgm")

def role_W320(p, base):
    v = Alloc(1)
    voff, t0, vso = v(), v(), v()
    R = v(4); I = v(4); C = v(4)
    p(f"""
    s_sub_u32 s48, s2, {base}
    s_lshl_b32 s48, s48, 2
    s_add_u32 s48, s48, s{SW}       ; e = p*4+q
    s_lshr_b32 s49, s48, 2
    s_lshl_b32 s49, s49, 5          ; 32p
    s_and_b32 s50, s48, 3
    s_lshl_b32 s50, s50, 9          ; 512q
    s_add_u32 s49, s49, s50
    s_mul_i32 s56, s49, 642
    s_add_u32 s57, s56, {64*642}
    s_add_u32 s58, s56, {128*642}
    s_add_u32 s59, s56, {192*642}
    v_and_b32 v{voff}, 31, v0
    v_lshrrev_b32 v{t0}, 5, v0
    v_lshl_add_u32 v{voff}, v{t0}, 8, v{voff}
    v_mul_u32_u24 v{voff}, 642, v{voff}
    v_lshlrev_b32 v{vso}, 4, v0
    s_lshl_b32 s60, s48, 10
    s_add_u32 s60, s60, {320*8192}
    """)
    srd(p, 32, PWR, WB); srd(p, 36, PWI, WB); srd(p, 40, PWS, WT_SZ, WT_OFF)
    for j in range(4):
        p(f"buffer_load_ushort v{R+j}, v{voff}, s[32:35], s{56+j} offen offset:640")
        p(f"buffer_load_ushort v{I+j}, v{voff}, s[36:39], s{56+j} offen offset:640")
    for j in range(4):
        p(f"v_lshl_or_b32 v{C+j}, v{I+j}, 16, v{R+j}")
    p(f"buffer_store_dwordx4 {V(C,4)}, v{vso}, s[40:43], s60 offen")
    p("s_endpgm")

def role_B1(p, base):
    v = Alloc(1)
    vA, vB, t0, t1, vso, vsk = [v() for _ in range(6)]
    K = v(11); Vv = v(8); SK = v(4); Wm = v(8); Ku = v(22, 2); Vu = v(16, 2); O = v(8)
    p(f"""
    s_sub_u32 s48, s2, {base}
    s_and_b32 s49, s48, 63          ; tb
    s_lshr_b32 s50, s48, 6
    s_lshl_b32 s50, s50, 2
    s_add_u32 s50, s50, s{SW}       ; cbk
    s_mul_i32 s51, s49, {32*1280}
    s_lshl_b32 s52, s50, 6
    s_add_u32 s51, s51, s52
    v_and_b32 v{t0}, 15, v0         ; cp
    v_lshrrev_b32 v{t1}, 4, v0      ; tgi
    v_mul_u32_u24 v{vB}, {8*1280}, v{t1}
    v_lshl_add_u32 v{vB}, v{t0}, 2, v{vB}
    v_add_u32 v{vB}, s51, v{vB}
    v_subrev_u32 v{vA}, 3840, v{vB}
    s_lshl_b32 s52, s50, 8
    v_lshl_add_u32 v{vsk}, v{t0}, 4, s52
    s_mov_b32 s53, 5120
    """)
    srd(p, 32, PK, XB); srd(p, 36, PV, XB); srd(p, 40, PSK, 640*8)
    p(f"buffer_load_dwordx4 {V(SK,4)}, v{vsk}, s[40:43], 0 offen")
    for r in range(11):
        if r < 3: p(f"buffer_load_dword v{K+r}, v{vA}, s[32:35], 0 offen offset:{1280*r}")
        else:
            rr = r-3
            p(f"buffer_load_dword v{K+r}, v{vB}, s[32:35], {'0' if rr < 4 else 's53'} offen offset:{1280*(rr%4)}")
    for r in range(8):
        p(f"buffer_load_dword v{Vv+r}, v{vB}, s[36:39], {'0' if r < 4 else 's53'} offen offset:{1280*(r%4)}")
    srd(p, 44, PWS, KV_SZ, KV_OFF)
    p(f"""
    v_lshrrev_b32 v{vso}, 2, v{t0}
    v_lshlrev_b32 v{vso}, 15, v{vso}
    v_sub_u32 v{t1}, 3, v{t1}
    v_lshl_add_u32 v{vso}, v{t1}, 6, v{vso}
    v_and_b32 v{t0}, 3, v{t0}
    v_lshl_add_u32 v{vso}, v{t0}, 4, v{vso}
    s_lshl_b32 s56, s50, 17
    s_lshl_b32 s52, s49, 8
    s_sub_u32 s52, {252*64}, s52
    s_add_u32 s56, s56, s52
    s_add_u32 s57, s56, 16384
    """)
    for m in range(4):
        for e in range(2):
            src = SK + 2*e + m//2
            if m % 2 == 0: p(f"v_lshlrev_b32 v{Wm+2*m+e}, 16, v{src}")
            else: p(f"v_and_b32 v{Wm+2*m+e}, 0xffff0000, v{src}")
    for r in range(11):
        p(f"v_lshlrev_b32 v{Ku+2*r}, 16, v{K+r}")
        p(f"v_and_b32 v{Ku+2*r+1}, 0xffff0000, v{K+r}")
    KS = Ku
    for t in range(8):
        p(f"v_pk_mul_f32 {V(KS+2*t,2)}, {V(Ku+2*t,2)}, {V(Wm+6,2)}")
        for m in (2,1,0):
            p(f"v_pk_fma_f32 {V(KS+2*t,2)}, {V(Ku+2*(t+3-m),2)}, {V(Wm+2*m,2)}, {V(KS+2*t,2)}")
    for t in range(8):
        p(f"v_lshlrev_b32 v{Vu+2*t}, 16, v{Vv+t}")
        p(f"v_and_b32 v{Vu+2*t+1}, 0xffff0000, v{Vv+t}")
        p(f"v_pk_mul_f32 {V(Vu+2*t,2)}, {V(Vu+2*t,2)}, {V(KS+2*t,2)}")
    for e in range(2):
        for i in range(4):
            cvt(p, O+4*e+i, V(Vu+2*(7-2*i)+e), V(Vu+2*(6-2*i)+e))
        p(f"buffer_store_dwordx4 {V(O+4*e,4)}, v{vso}, s[44:47], s{56+e} offen")
    p("s_endpgm")

def role_A2(p):
    v = Alloc(1); a = Alloc(0, 256, "a")
    voff, vwo, vso, fl, fh, t0, t1, t2, t3, t4, t5, sgn = [v() for _ in range(12)]
    U = v(32); D = v(64); Fm = v(32); E1 = v(32); T0 = v(32); Wp = v(32)
    X = a(32); E2 = a(32)
    p(f"""
    s_cmp_ge_u32 s2, 5
    s_cselect_b32 s48, 3, 0
    s_add_u32 s48, s48, s2          ; cg
    s_lshr_b32 s49, s48, 3          ; slot
    s_and_b32 s50, s48, 7
    s_lshl_b32 s50, s50, 2
    s_add_u32 s50, s50, s{SW}       ; k2
    s_mul_i32 s51, s50, 20
    s_add_u32 s51, s51, s49         ; k
    s_sub_u32 s52, 640, s51
    s_cmp_ge_u32 s50, 16
    s_cselect_b32 s51, s52, s51     ; column c
    s_cmp_eq_u32 s48, 4
    s_cselect_b32 s52, s{SW}, 0
    s_cmp_lg_u32 s52, 0
    s_cbranch_scc1 L_A2_end
    s_lshl_b32 s52, s48, 15
    s_lshl_b32 s53, s{SW}, 4
    s_add_u32 s56, s52, s53
    """)
    for i in range(1, 8): p(f"s_add_u32 s{56+i}, s56, {4096*i}")
    p(f"""
    v_lshlrev_b32 v{voff}, 6, v0
    v_lshlrev_b32 v{vwo}, 4, v0
    s_lshl_b32 s64, s51, 13
    s_add_u32 s65, s64, 4096
    """)
    srd(p, 32, PWS, Z1_SZ, Z1_OFF); srd(p, 36, PWS, WT_SZ, WT_OFF)
    for i in range(8):
        p(f"buffer_load_dwordx4 {A(X+4*i,4)}, v{voff}, s[32:35], s{56+i} offen")
    for pp in range(2):
        for q in range(4):
            p(f"buffer_load_dwordx4 {V(Wp+(pp*4+q)*4,4)}, v{vwo}, s[36:39], s{64+pp} offen offset:{1024*q}")
    srd(p, 40, PWS, Z2_SZ, Z2_OFF)
    p(f"""
    v_lshrrev_b32 v{t0}, 5, v0
    v_bfe_u32 v{t1}, v0, 2, 3
    v_lshl_add_u32 v{t1}, v{t0}, 4, v{t1}
    v_and_b32 v{t2}, 3, v0
    v_lshlrev_b32 v{t2}, 4, v{t2}
    v_lshl_add_u32 v{vso}, v{t1}, 15, v{t2}
    s_lshr_b32 s52, s50, 4          ; t
    s_lshl_b32 s52, s52, 2
    s_add_u32 s52, s52, s{SW}       ; t*4+j'
    s_lshl_b32 s52, s52, 2
    s_bfe_u32 s53, s50, 0x20002     ; g
    s_add_u32 s52, s52, s53
    s_lshl_b32 s52, s52, 4
    s_add_u32 s52, s52, s49         ; colpos
    s_lshl_b32 s52, s52, 6
    """)
    for mt in range(2):
        for q in range(4):
            p(f"s_add_u32 s{68+mt*4+q}, s52, {(q*32+mt*8)*32768}")
    p(f"""
    v_and_b32 v{t1}, 31, v0
    v_cvt_f32_u32 v{fl}, v{t1}
    v_lshlrev_b32 v{t0}, 2, v{t0}
    v_cvt_f32_u32 v{fh}, v{t0}
    v_and_b32 v{sgn}, 1, v0
    v_mul_u32_u24 v{sgn}, 0x8000, v{sgn}
    v_lshl_or_b32 v{sgn}, v{sgn}, 16, v{sgn}
    v_mul_f32 v{t4}, {F(1/32)}, v{fl}     ; l5/32
    v_mul_f32 v{t5}, {F(1/64)}, v{fl}     ; l5/64
    """)
    mi = lambda base, c, ks, j: base + (c*4+ks)*4 + j
    for ks in range(2):
        for j in range(4):
            kap = 8*ks + j
            p(f"v_add_f32 v{t0}, {F(float(kap))}, v{fh}")
            p(f"v_mul_f32 v{t1}, v{t0}, v{t4}")
            p(f"v_add_f32 v{t0}, v{t1}, v{t5}")
            p(f"v_cos_f32 v{t2}, v{t1}")
            p(f"v_sin_f32 v{t3}, v{t1}")
            p(f"v_cos_f32 v{D}, v{t0}")
            p(f"v_sin_f32 v{D+1}, v{t0}")
            cvt(p, mi(Fm,0,ks,j), V(t2), V(t3)); cvt(p, mi(Fm,1,ks,j), "-"+V(t3), V(t2))
            cvt(p, mi(E1,0,ks,j), V(D), V(D+1)); cvt(p, mi(E1,1,ks,j), "-"+V(D+1), V(D))
            for M in (Fm, E1):
                for c in range(2):
                    p(f"v_xor_b32 v{mi(M,c,ks+2,j)}, v{sgn}, v{mi(M,c,ks,j)}")
    p(f"v_mul_f32 v{t5}, {F(1/2048)}, v{fl}")
    for r in range(16):
        kap = 8*(r//4) + r%4
        p(f"v_add_f32 v{t0}, {F(float(kap))}, v{fh}")
        p(f"v_mul_f32 v{t1}, v{t0}, v{t5}")
        p(f"v_cos_f32 v{T0+2*r}, v{t1}")
        p(f"v_sin_f32 v{T0+2*r+1}, v{t1}")
    p(f"v_add_f32 v{t5}, {F(1/64)}, v{t4}")
    p(f"v_xor_b32 v{t4}, 0x80008000, v{sgn}")
    for ks in range(2):
        for j in range(4):
            kap = 8*ks + j
            p(f"v_add_f32 v{t0}, {F(float(kap))}, v{fh}")
            p(f"v_mul_f32 v{t1}, v{t0}, v{t5}")
            p(f"v_cos_f32 v{t2}, v{t1}")
            p(f"v_sin_f32 v{t3}, v{t1}")
            cvt(p, U, V(t2), V(t3)); cvt(p, U+1, "-"+V(t3), V(t2))
            p(f"v_xor_b32 v{U+2}, v{sgn}, v{U+1}")
            p(f"v_xor_b32 v{U+3}, v{t4}, v{U}")
            p(f"v_accvgpr_write_b32 a{mi(E2,0,ks,j)}, v{U}")
            p(f"v_accvgpr_write_b32 a{mi(E2,1,ks,j)}, v{U+1}")
            p(f"v_accvgpr_write_b32 a{mi(E2,0,ks+2,j)}, v{U+2}")
            p(f"v_accvgpr_write_b32 a{mi(E2,1,ks+2,j)}, v{U+3}")
    dd = lambda m, c: D + (m*2+c)*16
    for mt in range(2):
        for ks in range(4):
            for c in range(2):
                mfma32(p, dd(mt,c), X+(mt*4+ks)*4, mi(E1 if mt else Fm, c, ks, 0), None if ks == 0 else dd(mt,c), ak="a")
    def bfly(re0, im0, re1, im1, inverse):
        sg = "-" if inverse else ""
        ng = "" if inverse else "-"
        for r in range(16):
            c, s = T0+2*r, T0+2*r+1
            p(f"v_mul_f32 v{t0}, v{re0+r}, v{c}")
            p(f"v_mul_f32 v{t1}, v{im0+r}, v{c}")
            p(f"v_fma_f32 v{t0}, {sg}v{im0+r}, v{s}, v{t0}")
            p(f"v_fma_f32 v{t1}, {ng}v{re0+r}, v{s}, v{t1}")
            p(f"v_fma_f32 v{t2}, v{re1+r}, v{c}, v{t0}")
            p(f"v_fma_f32 v{t3}, v{im1+r}, v{c}, v{t1}")
            p(f"v_fma_f32 v{t2}, {sg}v{im1+r}, v{s}, v{t2}")
            p(f"v_fma_f32 v{t3}, {ng}v{re1+r}, v{s}, v{t3}")
            p(f"v_fma_f32 v{t0}, 2.0, v{t0}, -v{t2}")
            p(f"v_fma_f32 v{t1}, 2.0, v{t1}, -v{t3}")
            if inverse: cvt(p, U+r, V(t3), V(t2)); cvt(p, U+16+r, V(t1), V(t0))
            else:       cvt(p, U+r, V(t2), V(t3)); cvt(p, U+16+r, V(t0), V(t1))
    bfly(dd(0,0), dd(0,1), dd(1,0), dd(1,1), False)
    for pp in range(2):
        for q in range(4):
            for c in range(2):
                if pp: mfma32(p, dd(pp,c), mi(E2,c,q,0), U+pp*16+4*q, None if q == 0 else dd(pp,c), ak="a")
                else:  mfma32(p, dd(pp,c), mi(Fm,c,q,0), U+pp*16+4*q, None if q == 0 else dd(pp,c))
    for pp in range(2):
        for r in range(16):
            w = Wp+pp*16+r; re, im = dd(pp,0)+r, dd(pp,1)+r
            p(f"v_lshlrev_b32 v{t4}, 16, v{w}")
            p(f"v_and_b32 v{t5}, 0xffff0000, v{w}")
            p(f"v_mul_f32 v{t0}, v{re}, v{t4}")
            p(f"v_mul_f32 v{t1}, v{im}, v{t4}")
            p(f"v_fma_f32 v{t0}, -v{im}, v{t5}, v{t0}")
            p(f"v_fmac_f32 v{t1}, v{re}, v{t5}")
            cvt(p, U+pp*16+r, V(t1), V(t0))
    for pp in range(2):
        for q in range(4):
            for c in range(2):
                mfma32(p, dd(pp,c), U+pp*16+4*q, mi(E1 if pp else Fm, c, q, 0), None if q == 0 else dd(pp,c))
    bfly(dd(0,1), dd(0,0), dd(1,1), dd(1,0), True)
    for mt in range(2):
        for q in range(4):
            for c in range(2):
                if mt: mfma32(p, dd(mt,c), mi(E2,c,q,0), U+mt*16+4*q, None if q == 0 else dd(mt,c), ak="a")
                else:  mfma32(p, dd(mt,c), mi(Fm,c,q,0), U+mt*16+4*q, None if q == 0 else dd(mt,c))
    O = Wp
    for mt in range(2):
        for q in range(4):
            for j in range(4):
                r = 4*q+j
                cvt(p, O+mt*16+r, V(dd(mt,1)+r), V(dd(mt,0)+r))
            p(f"buffer_store_dwordx4 {V(O+mt*16+4*q,4)}, v{vso}, s[40:43], s{68+mt*4+q} offen")
    p.label("L_A2_end")
    p("s_endpgm")

LDS_U, LDS_C0, LDS_C1, LDS_WAVE = 0, 4608, 4608+4160, 12928
def role_B2(p, base):
    v = Alloc(1)
    vl16, vl64, vp0, vp1, vn, vg, t0, t1, t2, vBf, vso, vD = [v() for _ in range(12)]
    vAf = v(4); AD = v(4); Z = v(4)
    ACC = v(32); FA = v(64); FB = v(64)
    Lh = FA; Lu = FA+16; Lp = FA+32; Sh = FA+36
    p(f"""
    s_sub_u32 s48, s2, {base}       ; cgB
    s_lshr_b32 s49, s48, 1
    s_lshl_b32 s49, s49, 3
    s_and_b32 s50, s48, 1
    s_add_u32 s49, s49, s50
    s_lshl_b32 s50, s{SW}, 1
    s_add_u32 s49, s49, s50         ; channel d
    s_lshl_b32 s50, s49, 12         ; d*4096
    s_lshl_b32 s51, s48, 14
    s_lshl_b32 s52, s{SW}, 4
    s_add_u32 s56, s51, s52
    s_add_u32 s57, s56, 4096
    s_add_u32 s58, s56, 8192
    s_add_u32 s59, s56, 12288
    s_mul_i32 s53, s{SW}, {LDS_WAVE}
    v_lshlrev_b32 v{vl16}, 4, v0
    v_lshlrev_b32 v{vl64}, 6, v0
    v_subrev_u32 v{vp0}, 4, v{vl16}
    v_add_u32 v{vp1}, 1020, v{vl16}
    s_lshl_b32 s54, s49, 1
    v_mov_b32 v{t0}, s54
    """)
    p(f"s_add_u32 s32, s{PH}, s50"); p(f"s_addc_u32 s33, s{PH+1}, 0"); p("s_mov_b32 s34, 4096"); p("s_mov_b32 s35, 0x20000")
    srd(p, 36, PWS, KV_SZ, KV_OFF); srd(p, 40, PD, 1280)
    for it in range(4):
        p(f"buffer_load_dwordx4 {V(Lh+4*it,4)}, v{vl16}, s[32:35], 0 offen offset:{1024*it}")
    p(f"buffer_load_dword v{Lp}, v{vp0}, s[32:35], 0 offen")
    for it in range(1, 4):
        p(f"buffer_load_dword v{Lp+it}, v{vp1}, s[32:35], 0 offen offset:{1024*(it-1)}")
    for it in range(4):
        p(f"buffer_load_dwordx4 {V(Lu+4*it,4)}, v{vl64}, s[36:39], s{56+it} offen")
    p(f"buffer_load_ushort v{vD}, v{t0}, s[40:43], 0 offen")
    srd(p, 44, PWS, Y2_SZ, Y2_OFF)
    p(f"""
    v_and_b32 v{vn}, 15, v0
    v_lshrrev_b32 v{vg}, 4, v0
    v_add_u32 v{vl16}, s53, v{vl16}
    v_mov_b32 v{Z}, 0
    v_mov_b32 v{Z+1}, 0
    v_mov_b32 v{Z+2}, 0
    v_mov_b32 v{Z+3}, 0
    v_lshlrev_b32 v{t0}, 5, v{vn}
    v_lshlrev_b32 v{t1}, 4, v{vg}
    v_sub_u32 v{vBf}, v{t1}, v{t0}
    v_add_u32 v{vBf}, {LDS_U + 2032*2 - 64*56}, v{vBf}
    v_add_u32 v{vBf}, s53, v{vBf}
    v_lshrrev_b32 v{t0}, 1, v{vn}
    v_lshlrev_b32 v{t0}, 2, v{t0}
    v_add_u32 v{t0}, v{t0}, v{t1}
    v_and_b32 v{t2}, 1, v{vn}
    v_mul_u32_u24 v{t2}, {LDS_C1-LDS_C0}, v{t2}
    v_sub_u32 v{t0}, v{t0}, v{t2}
    v_add_u32 v{t0}, {LDS_C1+4}, v{t0}
    v_add_u32 v{vAf}, s53, v{t0}
    v_add_u32 v{vAf+1}, 1024, v{vAf}
    v_add_u32 v{vAf+2}, 2048, v{vAf}
    v_add_u32 v{vAf+3}, 3072, v{vAf}
    v_lshlrev_b32 v{vso}, 5, v{vn}
    v_lshl_add_u32 v{vso}, v{vg}, 3, v{vso}
    s_mov_b32 exec_hi, 0
    ds_write_b128 v{vl16}, {V(Z,4)} offset:{LDS_U+4096}
    s_mov_b32 exec_lo, 3
    ds_write_b128 v{vl16}, {V(Z,4)} offset:{LDS_C0}
    ds_write_b128 v{vl16}, {V(Z,4)} offset:{LDS_C1}
    s_mov_b64 exec, -1
    v_lshlrev_b32 v{t0}, 3, v{vg}
    v_add_u32 v{t0}, v{t0}, v{vn}
    v_sub_u32 v{t0}, 15, v{t0}
    v_and_b32 v{t1}, 1, v{t0}
    v_lshlrev_b32 v{t1}, 4, v{t1}            ; shift
    v_ashrrev_i32 v{t0}, 1, v{t0}
    """)
    for it in range(4):
        p(f"ds_write_b128 v{vl16}, {V(Lh+4*it,4)} offset:{LDS_C0+32+1024*it}")
        for i in range(4):
            lo = Lp+it if i == 0 else Lh+4*it+i-1
            p(f"v_alignbit_b32 v{Sh+4*it+i}, v{Lh+4*it+i}, v{lo}, 16")
        p(f"ds_write_b128 v{vl16}, {V(Sh+4*it,4)} offset:{LDS_C1+32+1024*it}")
    for it in range(4):
        p(f"ds_write_b128 v{vl16}, {V(Lu+4*it,4)} offset:{LDS_U+1024*it}")
    p(f"v_lshlrev_b32 v{vD}, v{t1}, v{vD}")
    for i in range(4):
        p(f"v_cmp_eq_u32 vcc, {i}, v{t0}")
        p(f"v_cndmask_b32 v{AD+i}, 0, v{vD}, vcc")
    def ldA(c, i):
        r = FA + (c%2)*32 + 4*i; o = (8*(i%2)+c)*16
        return [f"ds_read2_b32 {V(r,2)}, v{vAf+i//2} offset0:{o} offset1:{o+1}",
                f"ds_read2_b32 {V(r+2,2)}, v{vAf+i//2} offset0:{o+2} offset1:{o+3}"]
    def ldB(c, l):
        r = FB + (c%2)*32 + 4*l
        return [f"ds_read_b128 {V(r,4)}, v{vBf} offset:{64*(56-(8*l-c))}"]
    def loads(c):
        out = []
        for i in range(8): out += ldB(c, i) + ldA(c, i)
        return out
    for s in loads(0): p(s)
    order = sorted([(i,l) for i in range(8) for l in range(8) if i+l <= 7], key=lambda x: (max(x), x[0]+x[1]))
    first = [True]*8
    for c in range(8):
        nxt = loads(c+1) if c < 7 else []
        k = 0
        if c == 0:
            pass
        for n, (i,l) in enumerate(order):
            j = i+l
            if c == 0 and i == 0:
                mfma16(p, ACC+4*l, AD, FB+4*l, None if first[l] else ACC+4*l); first[l] = False
            mfma16(p, ACC+4*j, FA+(c%2)*32+4*i, FB+(c%2)*32+4*l, None if first[j] else ACC+4*j); first[j] = False
            want = (n+1)*len(nxt)//30
            while k < min(want, len(nxt)):
                p(nxt[k]); k += 1
    O = FA
    for j in range(8):
        cvt(p, O+2*j, V(ACC+4*j), V(ACC+4*j+1)); cvt(p, O+2*j+1, V(ACC+4*j+2), V(ACC+4*j+3))
        p(f"buffer_store_dwordx2 {V(O+2*j,2)}, v{vso}, s[44:47], s50 offen offset:{512*j}")
    p("s_endpgm")

def role_A3(p):
    v = Alloc(1)
    vn, vg, vo0, vo1, vo2, vs0, vs1, t0, t1, t2, t3, fd, fg = [v() for _ in range(13)]
    L = v(32); P = v(32); D = v(64); M2 = v(32); T1 = v(16); M1 = v(4); MX = v(16)
    p(f"""
    s_lshr_b32 s48, s2, 4           ; a
    s_and_b32 s49, s2, 15
    s_lshl_b32 s49, s49, 2
    s_add_u32 s49, s49, s{SW}       ; n2
    s_lshl_b32 s50, s48, 8
    s_add_u32 s50, s50, s49
    s_mul_i32 s50, s50, 2560
    s_lshl_b32 s51, s2, 15
    s_lshl_b32 s52, s{SW}, 4
    s_add_u32 s56, s51, s52
    """)
    for i in range(1, 8): p(f"s_add_u32 s{56+i}, s56, {4096*i}")
    p(f"""
    v_and_b32 v{vn}, 15, v0
    v_lshrrev_b32 v{vg}, 4, v0
    v_lshlrev_b32 v{t0}, 6, v0
    v_mov_b32 v{t1}, 0x80000000
    v_cmp_gt_u32 vcc, 11, v{vn}
    v_cndmask_b32 v{vo0}, v{t1}, v{t0}, vcc       ; t=0: slots 0..10
    v_subrev_u32 v{t2}, 1, v{vn}
    v_cmp_gt_u32 vcc, 9, v{t2}
    v_cndmask_b32 v{vo1}, v{t1}, v{t0}, vcc       ; t=1: slots 1..9
    v_cmp_eq_u32 vcc, 0, v0
    v_cndmask_b32 v{vo2}, v{vo1}, v{t0}, vcc
    """)
    srd(p, 32, PWS, Z2_SZ, Z2_OFF)
    for t in range(2):
        for jp in range(4):
            vo = vo0 if t == 0 else (vo2 if jp == 0 else vo1)
            p(f"buffer_load_dwordx4 {V(L+(t*4+jp)*4,4)}, v{vo}, s[32:35], s{56+t*4+jp} offen")
    srd(p, 36, POUT, 2048*2560)
    p(f"""
    v_lshlrev_b32 v{vs0}, 6, v{vn}
    v_lshl_add_u32 v{vs0}, v{vg}, 4, v{vs0}       ; main: (32n+8G)*2
    v_lshrrev_b32 v{t0}, 2, v{vn}
    v_and_b32 v{t1}, 3, v{vn}
    v_mul_u32_u24 v{vs1}, {64*2560}, v{t0}
    v_lshl_add_u32 v{vs1}, v{t1}, 6, v{vs1}
    v_lshl_add_u32 v{vs1}, v{vg}, 4, v{vs1}
    v_add_u32 v{vs1}, 1024, v{vs1}                ; extra: row n/4, d1 = 16+n%4
    v_lshl_add_u32 v{t2}, v{t0}, 3, v{t1}         ; d2X = 8(n/4)+n%4
    v_cvt_f32_u32 v{fd}, v{t2}
    v_lshlrev_b32 v{t2}, 2, v{vg}
    v_cvt_f32_u32 v{fg}, v{t2}                    ; 4g
    s_add_u32 s64, s50, {64*2560}
    s_add_u32 s65, s50, {128*2560}
    s_add_u32 s66, s50, {192*2560}
    """)
    C = D
    m2 = lambda xy, c, t: M2 + ((xy*2+c)*2+t)*4
    p(f"""
    v_and_b32 v{C+8}, 1, v0
    v_mul_u32_u24 v{C+8}, 0x8000, v{C+8}
    v_lshl_or_b32 v{C+8}, v{C+8}, 16, v{C+8}
    v_xor_b32 v{C+8}, 0x80000000, v{C+8}
    """)
    for xy in range(2):
        p(f"v_add_f32 v{t0}, {F(4.0*xy)}, v{fd}")
        p(f"v_mul_f32 v{t1}, {F(1/640)}, v{t0}")
        p(f"v_mul_f32 v{t0}, {F(1/32)}, v{t0}")
        for j in range(4):
            p(f"v_add_f32 v{t2}, {F(float(j))}, v{fg}")
            p(f"v_mul_f32 v{C}, v{t2}, v{t0}")
            p(f"v_mul_f32 v{C+1}, v{t2}, v{t1}")
            p(f"v_cos_f32 v{C+2}, v{C}")
            p(f"v_sin_f32 v{C+3}, v{C}")
            p(f"v_cos_f32 v{C+4}, v{C+1}")
            p(f"v_sin_f32 v{C+5}, v{C+1}")
            cvt(p, m2(xy,0,0)+j, V(C+2), "-"+V(C+3))
            cvt(p, m2(xy,1,0)+j, V(C+3), V(C+2))
            p(f"v_xor_b32 v{m2(xy,0,1)+j}, v{C+8}, v{m2(xy,0,0)+j}")
            p(f"v_xor_b32 v{m2(xy,1,1)+j}, v{C+8}, v{m2(xy,1,0)+j}")
            sc = F(2.0/(2048*640))
            p(f"v_mul_f32 v{T1+(xy*4+j)*2}, {sc}, v{C+4}")
            p(f"v_mul_f32 v{T1+(xy*4+j)*2+1}, {sc}, v{C+5}")
    p(f"""
    v_cvt_f32_u32 v{t0}, v{vn}
    v_mul_f32 v{t0}, {F(1/20)}, v{t0}
    v_and_b32 v{t1}, 3, v{vn}
    v_add_u32 v{t1}, 16, v{t1}
    v_cvt_f32_u32 v{t1}, v{t1}
    v_mul_f32 v{t1}, {F(1/20)}, v{t1}
    v_lshrrev_b32 v{t3}, 2, v{vn}
    """)
    for J in range(4):
        p(f"v_add_f32 v{t2}, {F(float(J))}, v{fg}")
        p(f"v_mul_f32 v{C}, v{t2}, v{t0}")
        p(f"v_mul_f32 v{C+1}, v{t2}, v{t1}")
        p(f"v_cos_f32 v{C+2}, v{C}")
        p(f"v_sin_f32 v{C+3}, v{C}")
        p(f"v_cos_f32 v{C+4}, v{C+1}")
        p(f"v_sin_f32 v{C+5}, v{C+1}")
        cvt(p, M1+J, V(C+2), "-"+V(C+3))
        cvt(p, C+10+J, V(C+4), "-"+V(C+5))
    for j in range(4):
        p(f"v_cmp_eq_u32 vcc, {j}, v{t3}")
        for J in range(4):
            p(f"v_cndmask_b32 v{MX+4*j+J}, 0, v{C+10+J}, vcc")
    for t in range(2):
        for jp in range(4):
            for j in range(4):
                p(f"v_mov_b32 v{P+(j*2+t)*4+jp}, v{L+(t*4+jp)*4+j}")
    d3 = lambda j, xy, c: D + ((j*2+xy)*2+c)*4
    for j in range(4):
        for xy in range(2):
            for c in range(2):
                mfma16(p, d3(j,xy,c), P+(j*2+0)*4, m2(xy,c,0), None)
                mfma16(p, d3(j,xy,c), P+(j*2+1)*4, m2(xy,c,1), d3(j,xy,c))
    Q = L
    for j in range(4):
        for xy in range(2):
            for J in range(4):
                c, s = T1+(xy*4+J)*2, T1+(xy*4+J)*2+1
                re, im = d3(j,xy,0)+J, d3(j,xy,1)+J
                a, b = (t0, t1) if J % 2 == 0 else (t2, t3)
                p(f"v_mul_f32 v{a}, v{re}, v{c}")
                p(f"v_mul_f32 v{b}, v{im}, v{c}")
                p(f"v_fma_f32 v{a}, -v{im}, v{s}, v{a}")
                p(f"v_fmac_f32 v{b}, v{re}, v{s}")
                cvt(p, Q+(j*2+xy)*4+J, V(a), V(b))
    d4 = lambda j, xy: D + (j*2+xy)*4
    for j in range(4):
        for xy in range(2):
            mfma16(p, d4(j,xy), Q+(j*2+xy)*4, M1, None)
            mfma16(p, d4(4,xy), Q+(j*2+xy)*4, MX+4*j, None if j == 0 else d4(4,xy))
    O = P
    for j in range(5):
        for xy in range(2):
            cvt(p, O+4*j+2*xy, V(d4(j,xy)), V(d4(j,xy)+1)); cvt(p, O+4*j+2*xy+1, V(d4(j,xy)+2), V(d4(j,xy)+3))
        if j < 4: p(f"buffer_store_dwordx4 {V(O+4*j,4)}, v{vs0}, s[36:39], {'s50' if j == 0 else 's%d'%(63+j)} offen")
        else:     p(f"buffer_store_dwordx4 {V(O+4*j,4)}, v{vs1}, s[36:39], s50 offen")
    p("s_endpgm")

def role_B3(p, base):
    v = Alloc(1)
    vq, vy, vo, t0, t1 = [v() for _ in range(5)]
    Y = v(8); Q = v(8); Yu = v(16, 2); Qu = v(16, 2); O = v(8)
    p(f"""
    s_sub_u32 s48, s2, {base}
    s_and_b32 s49, s48, 31          ; t block (64)
    s_lshr_b32 s50, s48, 5
    s_lshl_b32 s51, s49, 3
    s_lshl_b32 s52, s{SW}, 1
    s_add_u32 s51, s51, s52
    v_and_b32 v{t0}, 31, v0         ; cp
    v_lshrrev_b32 v{t1}, 5, v0
    v_add_u32 v{t1}, s51, v{t1}     ; t-group
    s_lshl_b32 s52, s50, 5
    v_add_u32 v{t0}, s52, v{t0}
    v_lshlrev_b32 v{vy}, 13, v{t0}
    v_lshl_add_u32 v{vy}, v{t1}, 4, v{vy}
    v_mul_u32_u24 v{vq}, {8*1280}, v{t1}
    v_lshl_add_u32 v{vq}, v{t0}, 2, v{vq}
    v_mul_u32_u24 v{vo}, {8*2560}, v{t1}
    v_lshl_add_u32 v{vo}, v{t0}, 2, v{vo}
    s_mov_b32 s53, 5120
    s_mov_b32 s54, 4096
    s_mov_b32 s55, 10240
    s_mov_b32 s56, 15360
    """)
    srd(p, 32, PWS, Y2_SZ, Y2_OFF); srd(p, 36, PQ, XB)
    p(f"buffer_load_dwordx4 {V(Y,4)}, v{vy}, s[32:35], 0 offen")
    p(f"buffer_load_dwordx4 {V(Y+4,4)}, v{vy}, s[32:35], s54 offen")
    for r in range(8):
        p(f"buffer_load_dword v{Q+r}, v{vq}, s[36:39], {'0' if r < 4 else 's53'} offen offset:{1280*(r%4)}")
    srd(p, 40, POUT, 2048*2560)
    for t in range(8):
        for e in range(2):
            src = Y+4*e+t//2
            if t % 2 == 0: p(f"v_lshlrev_b32 v{Yu+2*t+e}, 16, v{src}")
            else: p(f"v_and_b32 v{Yu+2*t+e}, 0xffff0000, v{src}")
    for t in range(8):
        p(f"v_lshlrev_b32 v{Qu+2*t}, 16, v{Q+t}")
        p(f"v_and_b32 v{Qu+2*t+1}, 0xffff0000, v{Q+t}")
        p(f"v_pk_mul_f32 {V(Qu+2*t,2)}, {V(Qu+2*t,2)}, {V(Yu+2*t,2)}")
        cvt(p, O+t, V(Qu+2*t), V(Qu+2*t+1))
        so = ["0","s53","s55","s56"][t//2]
        p(f"buffer_store_dword v{O+t}, v{vo}, s[40:43], {so} offen offset:{1280+2560*(t%2)}")
    p("s_endpgm")

def kernel(name, roles):
    p = Prog()
    p.raw(f".globl {name}\n.p2align 8\n.type {name},@function\n{name}:")
    prologue(p)
    base = 0; bases = []
    for i, (cnt, fn) in enumerate(roles):
        bases.append(base); base += cnt
    total = base
    p(f"s_cmp_ge_u32 s2, {total}")
    p(f"s_cbranch_scc1 L_{name}_exit")
    for i in range(len(roles)-1, 0, -1):
        p(f"s_cmp_ge_u32 s2, {bases[i]}")
        p(f"s_cbranch_scc1 L_{name}_r{i}")
    st = save(p)
    for i, (cnt, fn) in enumerate(roles):
        if i:
            p.raw(".p2align 6")
            p.label(f"L_{name}_r{i}"); restore(p, st)
            p("s_nop 1")
        fn(p, bases[i])
    p.label(f"L_{name}_exit"); p.reset_state()
    p("s_endpgm")
    return p, total

def descriptor(name, p):
    nv = p.maxv + 1
    acc = (nv + 3)//4*4
    tot = acc + (p.maxa + 1) if p.maxa >= 0 else nv
    return f""".p2align 6
.amdhsa_kernel {name}
  .amdhsa_next_free_vgpr {tot}
  .amdhsa_next_free_sgpr {max(p.maxs+1, 16)}
  .amdhsa_accum_offset {acc}
  .amdhsa_group_segment_fixed_size 0
  .amdhsa_kernarg_size 96
  .amdhsa_user_sgpr_count 2
  .amdhsa_user_sgpr_kernarg_segment_ptr 1
  .amdhsa_system_sgpr_workgroup_id_x 1
  .amdhsa_float_denorm_mode_32 3
.end_amdhsa_kernel
"""

def build():
    k1, n1 = kernel("k1_kernel", [(128, lambda p,b: role_A1(p)), (320, role_B1), (160, role_WT), (2, role_W320)])
    k2, n2 = kernel("k2_kernel", [(81, lambda p,b: role_A2(p)), (160, role_B2)])
    k3, n3 = kernel("k3_kernel", [(128, lambda p,b: role_A3(p)), (320, role_B3)])
    hdr = open("cdna_kernels/%s.s.ref" % NAME).read().split("; Override launch")[0]
    s = hdr
    s += f"; @launch kernel=k1_kernel grid=({n1},1,1) block=(256,1,1) lds=16384\n"
    s += f"; @launch kernel=k2_kernel grid=({n2},1,1) block=(256,1,1) lds={4*LDS_WAVE}\n"
    s += f"; @launch kernel=k3_kernel grid=({n3},1,1) block=(256,1,1) lds=0\n"
    s += '.amdgcn_target "amdgcn-amd-amdhsa--gfx950"\n.text\n'
    for k in (k1, k2, k3): s += k.text()
    s += '.section .rodata,"a"\n'
    for n, k in (("k1_kernel",k1),("k2_kernel",k2),("k3_kernel",k3)):
        s += descriptor(n, k)
        print(n, "vgpr", k.maxv+1, "agpr", k.maxa+1, "sgpr", k.maxs+1, k.stats, file=sys.stderr)
    return s

if __name__ == "__main__":
    out = sys.argv[1] if len(sys.argv) > 1 else "cdna_kernels/%s.s" % NAME
    open(out, "w").write(build())
```
